```python
import torch

def _softmax(x, axis=-1):
    return torch.softmax(x, dim=axis)
def _gelu(x):
    return torch.nn.functional.gelu(x, approximate="tanh")
def _silu(x):
    return torch.nn.functional.silu(x)
def _sigmoid(x):
    return torch.sigmoid(x)
def _layernorm(x, axis=-1, eps=1e-5):
    m = x.mean(dim=axis, keepdim=True)
    v = x.var(dim=axis, keepdim=True, unbiased=False)
    return (x - m) / torch.sqrt(v + eps)
def _scatter_add(tgt, idx, src, axis=0):
    return tgt.clone().index_add_(axis, idx, src)
def _segment_sum(src, seg, n):
    out = torch.zeros((n,) + src.shape[1:], dtype=src.dtype)
    return out.index_add_(0, seg, src)
def _pad(x, pw):
    flat = tuple(v for pair in reversed(pw) for v in pair)
    return torch.nn.functional.pad(x, flat)

kernel_name = 'gather_scatter__molecular_angular_gemnet__graph'

def setup_inputs():

    _w = (lambda a: (lambda t: t.to(torch.bfloat16) if t.is_floating_point() else t)(torch.as_tensor(a)))
    N, deg, De, L = 25000, 16, 16, 2
    E = N * deg
    T = E * deg
    NR = 8
    dist = torch.rand(E).to(float)
    angle = (torch.rand(T) * torch.pi).to(float)
    centers = torch.linspace(0.0, 1.0, NR).to(float)
    ang_freq = torch.arange(1, L + 1).to(float)
    return {
        "m": _w((lambda *s: torch.randn(*s, dtype=torch.bfloat16) * 0.05)(E, De)),
        "idx_in": _w((lambda lo, hi, *s: torch.randint(lo, hi, s))(0, E, T).to(torch.int64)),
        "idx_out": _w((lambda lo, hi, *s: torch.randint(lo, hi, s))(0, E, T).to(torch.int64)),
        "dist": _w(dist),
        "angle": _w(angle),
        "centers": _w(centers),
        "ang_freq": _w(ang_freq),
        "w_rbf": _w((lambda *s: torch.randn(*s, dtype=torch.bfloat16) * 0.2)(NR, De)),
        "w_sbf": _w((lambda *s: torch.randn(*s, dtype=torch.bfloat16) * 0.2)(NR * L, De)),
        "w_down": _w((lambda *s: torch.randn(*s, dtype=torch.bfloat16) * 0.2)(De, De)),
        "w_up": _w((lambda *s: torch.randn(*s, dtype=torch.bfloat16) * 0.2)(De, De)),
    }

def reference(m, idx_in, idx_out, dist, angle, centers, ang_freq, w_rbf, w_sbf, w_down, w_up):
    E, De = m.shape[0], m.shape[1]
    NR = centers.shape[0]
    L = ang_freq.shape[0]
    rbf = torch.exp(-10.0 * (dist[:, None] - centers[None, :]) ** 2)
    cbf = torch.cos(ang_freq[None, :] * angle[:, None])
    rbf_t = rbf[idx_out]
    sbf = torch.reshape(rbf_t[:, :, None] * cbf[:, None, :], (-1, NR * L))
    x = (m[idx_in] @ w_down) * (sbf @ w_sbf)
    agg = _segment_sum(x, idx_out, E)
    return m + (agg @ w_up) * (rbf @ w_rbf)
```

```python
import re

TRANS = ('v_exp_f32','v_log_f32','v_rcp_f32','v_rsq_f32','v_sqrt_f32','v_sin_f32','v_cos_f32')

def _regs(tok):
    tok = tok.strip()
    tok = re.sub(r'^(-|abs\(|sext\()+', '', tok).rstrip(')')
    m = re.fullmatch(r'([vsa])\[(\d+):(\d+)\]', tok)
    if m:
        return {f'{m.group(1)}{i}' for i in range(int(m.group(2)), int(m.group(3))+1)}
    m = re.fullmatch(r'([vsa])(\d+)', tok)
    if m:
        return {tok}
    if tok in ('vcc','vcc_lo','vcc_hi'): return {'vcc'}
    if tok in ('exec','exec_lo','exec_hi'): return {'exec'}
    if tok == 'm0': return {'m0'}
    return set()

class Ins:
    def __init__(self, text):
        self.text = text
        body = text.split(';')[0].strip()
        sp = body.split(None, 1)
        self.op = sp[0]
        rest = sp[1] if len(sp) > 1 else ''
        ops, depth, cur = [], 0, ''
        for ch in rest:
            if ch == '[': depth += 1
            if ch == ']': depth -= 1
            if ch == ',' and depth == 0:
                ops.append(cur.strip()); cur = ''
            else: cur += ch
        if cur.strip(): ops.append(cur.strip())
        self.mods = ''
        if ops:
            parts = ops[-1].split(None, 1)
            ops[-1] = parts[0]
            if len(parts) > 1: self.mods = parts[1]
        self.ops = ops
        op = self.op
        self.mfma = op.startswith('v_mfma')
        self.valu = op.startswith('v_') and not self.mfma
        self.ds = op.startswith('ds_')
        self.vmem = op.startswith('buffer_') or op.startswith('global_')
        self.salu = op.startswith('s_')
        self.trans = any(op.startswith(t) for t in TRANS)
        self.dpp = '_dpp' in op
        self.defs, self.uses = set(), set()
        self.srcC = set(); self.srcAB = set()
        R = [_regs(o) for o in ops]
        if self.mfma:
            self.defs = R[0]; self.srcAB = R[1] | R[2]; self.srcC = R[3]; self.uses = self.srcAB | self.srcC
            self.passes = 8 if '32x32' in op else 4
        elif self.valu:
            if op.startswith('v_cmpx'):
                self.defs = R[0] | {'exec'}; self.uses = set().union(*R[1:])
            elif op.startswith('v_cmp'):
                self.defs = R[0]; self.uses = set().union(*R[1:])
            elif op.startswith(('v_add_co','v_sub_co','v_addc_co','v_subb_co','v_subrev_co')):
                self.defs = R[0] | R[1]; self.uses = set().union(*R[2:])
            elif op.startswith('v_nop'):
                pass
            else:
                self.defs = R[0]; self.uses = set().union(*R[1:]) if len(R) > 1 else set()
                if op.startswith(('v_fmac','v_writelane')) or self.dpp: self.uses |= R[0]
                if op.startswith('v_permlane'): self.defs |= R[1]; self.uses |= R[0]
                if op.startswith('v_cndmask') and len(ops) == 3: self.uses |= {'vcc'}
        elif self.ds:
            if op.startswith(('ds_read','ds_bpermute','ds_permute','ds_swizzle')) or '_rtn' in op:
                self.defs = R[0]; self.uses = set().union(*R[1:])
            else:
                self.uses = set().union(*R)
        elif self.vmem:
            if '_load' in op:
                self.defs = R[0]; self.uses = set().union(*R[1:])
            else:
                self.uses = set().union(*R)
                self.store_data = R[0] if op.startswith('buffer_') else R[1]
        elif self.salu:
            if op.startswith(('s_cmp','s_bitcmp','s_cbranch','s_branch','s_waitcnt','s_nop','s_barrier','s_endpgm','s_setprio','s_sleep')):
                self.uses = set().union(*R) if R else set()
            else:
                self.defs = R[0] if R else set(); self.uses = set().union(*R[1:]) if len(R) > 1 else set()
                if 'saveexec' in op: self.defs |= {'exec'}; self.uses |= {'exec'}
        self.wide_store = self.vmem and ('store_dwordx3' in op or 'store_dwordx4' in op)
        self.states = 1
        if op == 's_nop': self.states = int(ops[0], 0) + 1

def need(p, c):
    n = 0
    vg = lambda s: {r for r in s if r[0] in 'va' and r != 'vcc'}
    sg = lambda s: {r for r in s if r[0] == 's' or r == 'vcc'}
    if p.valu:
        pv = vg(p.defs); ps = sg(p.defs)
        if c.mfma and pv & c.uses: n = max(n, 2)
        if c.valu and c.dpp and pv & c.uses: n = max(n, 2)
        if c.valu and c.op.startswith('v_permlane') and pv & c.uses: n = max(n, 2)
        if c.valu and c.op.startswith(('v_readlane','v_readfirstlane')) and pv & c.uses: n = max(n, 1)
        if p.trans and (c.valu or c.mfma) and pv & c.uses: n = max(n, 1)
        if ('_sdwa' in p.op or 'op_sel' in p.mods) and c.valu and pv & (c.uses | c.defs): n = max(n, 1)
        if ps:
            if c.valu and ps & c.uses:
                n = max(n, 4 if c.op.startswith(('v_readlane','v_writelane')) else 2)
            if c.vmem and ps & c.uses: n = max(n, 5)
            if c.salu and ps & c.uses: n = max(n, 1)
        if 'exec' in p.defs:
            if c.valu and c.dpp: n = max(n, 5)
            if c.mfma: n = max(n, 4)
            if c.valu and c.op.startswith(('v_readlane','v_readfirstlane','v_writelane','v_permlane')): n = max(n, 4)
            if c.valu and 'exec' in c.uses: n = max(n, 2)
            if c.salu and 'exec' in c.uses: n = max(n, 1)
    if p.mfma:
        big = {4: 8, 8: 12}[p.passes]
        if c.mfma:
            if p.defs & c.srcAB: n = max(n, big)
            if p.defs & c.srcC and not (p.defs == c.srcC and p.passes == c.passes): n = max(n, big - 2)
            if p.defs & c.defs and not (p.defs == c.srcC and p.passes == c.passes): n = max(n, big)
        elif c.valu or c.ds or c.vmem:
            if p.defs & (c.uses | c.defs): n = max(n, big)
        if c.valu and p.srcC & c.defs: n = max(n, {4: 3, 8: 7}[p.passes])
    if p.wide_store and (c.valu or c.mfma) and p.store_data & c.defs: n = max(n, 2)
    if p.wide_store and (c.ds or c.vmem) and p.store_data & c.defs: n = max(n, 1)
    if p.ds and p.op.startswith(('ds_write_b128','ds_write_b96','ds_write2_b64')) and c.valu and p.uses & vg(c.defs): n = max(n, 2)
    if p.salu and 'm0' in p.defs and (c.vmem or c.ds): n = max(n, 1)
    return n

class Asm:
    def __init__(self):
        self.items = []
        self.opt = None
        self.nopt = 0
        self.uid = 0
    def I(self, text):
        for t in text.strip().split('\n'):
            t = t.strip()
            if not t or t.startswith(';'):
                if t: self.items.append(('raw', '    ' + t))
                continue
            self.items.append(('i', Ins(t), self.opt))
    def raw(self, text): self.items.append(('raw', text))
    def label(self, name): self.items.append(('raw', name + ':'))
    def newlabel(self, pre='L'):
        self.uid += 1
        return f'{pre}_{self.uid}'
    def opt_begin(self):
        assert self.opt is None
        self.nopt += 1; self.opt = self.nopt
    def opt_end(self): self.opt = None
    def flush(self):
        self.items.append(('flush',))
    def reset(self):
        self.items.append(('reset',))
    def render(self):
        out = []
        hist = []
        W = 14
        for it in self.items:
            if it[0] == 'raw': out.append(it[1]); continue
            if it[0] == 'reset': hist = []; continue
            if it[0] == 'flush':
                worst = 0; dist = 0
                for p, po in reversed(hist[-W:]):
                    req = 0
                    if p.mfma: req = {4: 8, 8: 12}[p.passes]
                    elif p.valu: req = 5 if any(r[0] == 's' or r in ('vcc','exec') for r in p.defs) else 2
                    elif p.wide_store or p.ds: req = 2
                    elif p.salu and 'm0' in p.defs: req = 1
                    worst = max(worst, req - dist)
                    if po is None: dist += p.states
                if worst > 0:
                    out.append(f'    s_nop {worst-1}')
                hist = []
                continue
            c, co = it[1], it[2]
            pad = 0; dist = 0
            k = len(hist) - 1
            while k >= 0 and dist < W:
                p, po = hist[k]
                d = 0
                for q, qo in hist[k+1:]:
                    if qo is None or qo == co or qo == po: d += q.states
                pad = max(pad, need(p, c) - d)
                if po is None or po == co: dist += p.states
                k -= 1
            while pad > 0:
                n = min(pad, 16)
                nop = Ins(f's_nop {n-1}')
                out.append('    ' + nop.text); hist.append((nop, co)); pad -= n
            out.append('    ' + c.text)
            hist.append((c, co))
            if len(hist) > 200: hist = hist[-120:]
        return '\n'.join(out) + '\n'
```

```python
from asmlib import Asm
from params import *

def gen_k1(a: Asm):
    I = a.I
    name = 'gs_bin_kernel'
    a.raw(f'.globl {name}\n.p2align 8\n.type {name},@function')
    a.label(name); a.reset()
    CNT = 0
    TIMG = S*1024
    SB = K1_SB
    O = lambda r, e=0: 8 + r*4 + e
    N = lambda r, e=0: 36 + r*4 + e
    A = lambda r, e=0: 64 + r*2 + e
    T0, T1, T2, T3 = 78, 79, 80, 81
    soff = lambda b: '0' if b == 0 else f's{40 + b//8192}'
    I(f'''
    s_cmp_ge_u32 s2, {NCH}
    s_cbranch_scc1 K1_END
    s_load_dwordx4 s[4:7], s[0:1], 8
    s_load_dwordx2 s[8:9], s[0:1], 32
    s_load_dwordx2 s[10:11], s[0:1], 104
    v_lshlrev_b32 v1, 4, v0
    v_lshlrev_b32 v2, 3, v0
    v_mov_b32 v4, 0
    v_mov_b32 v5, 0
    ds_write_b64 v2, v[4:5] offset:{SB}
    v_lshrrev_b32 v3, 6, v0
    s_mov_b32 s32, {M1}
    s_mov_b32 s33, {M2}
    s_mov_b32 s34, {-BK}
    s_mov_b32 s35, 0xff000000
    v_readfirstlane_b32 s36, v3
    ''')
    for k in range(1, 17): I(f's_mov_b32 s{40+k}, {8192*k}')
    I(f'''
    s_mul_i32 s3, s2, {CH*4}
    s_mul_i32 s37, s2, {CH*2}
    s_mul_i32 s38, s2, {CSTRIDE}
    s_mul_i32 s39, s2, {TSTRIDE}
    s_add_u32 s39, s39, {TBL_OFF}
    v_add_u32 v6, {6*16384}, v1
    v_add_u32 v7, {6*8192}, v2
    s_mov_b32 s14, {CH*4}
    s_mov_b32 s15, 0x20000
    s_mov_b32 s18, {CH*4}
    s_mov_b32 s19, 0x20000
    s_mov_b32 s22, {CH*2}
    s_mov_b32 s23, 0x20000
    s_mov_b32 s26, {CH*6}
    s_mov_b32 s27, 0x20000
    s_mov_b32 s30, {257*16}
    s_mov_b32 s31, 0x20000
    s_waitcnt lgkmcnt(0)
    s_add_u32 s12, s4, s3
    s_addc_u32 s13, s5, 0
    s_add_u32 s16, s6, s3
    s_addc_u32 s17, s7, 0
    s_add_u32 s20, s8, s37
    s_addc_u32 s21, s9, 0
    s_add_u32 s24, s10, s38
    s_addc_u32 s25, s11, 0
    s_add_u32 s28, s10, s39
    s_addc_u32 s29, s11, 0
    ''')
    for r in range(7):
        va, so = ('v1', soff(r*16384)) if r < 6 else ('v6', '0')
        I(f'buffer_load_dwordx4 v[{O(r)}:{O(r,3)}], {va}, s[16:19], {so} offen {K1_LD}')
        I(f'buffer_load_dwordx4 v[{N(r)}:{N(r,3)}], {va}, s[12:15], {so} offen {K1_LD}')
    for r in range(7):
        va, so = ('v2', soff(r*8192)) if r < 6 else ('v7', '0')
        I(f'buffer_load_dwordx2 v[{A(r)}:{A(r,1)}], {va}, s[20:23], {so} offen {K1_LD}')
    I(f'''
    v_mov_b32 v4, 1
    v_mov_b32 v5, 6
    v_cmp_gt_u32 vcc, {CH//4 - 6*1024}, v0
    s_mov_b64 s[60:61], vcc
    ''')
    I('s_barrier')
    def hist(r):
        for e in range(4):
            o, n = O(r, e), N(r, e)
            I(f'''
            v_mul_hi_u32_u24 v{T0}, s32, v{o}
            v_mul_hi_u32_u24 v{T1}, s33, v{n}
            v_mad_i32_i24 v{T2}, v{T0}, s34, v{o}
            v_lshl_or_b32 v{o}, v{T1}, 8, v{T0}
            v_and_b32 v{T3}, 7, v{T2}
            v_lshlrev_b32 v{o}, 2, v{o}
            v_lshl_or_b32 v{n}, v{n}, 5, v{T3}
            v_lshlrev_b32 v{T2}, 21, v{T2}
            ds_add_u32 v{o}, v4 offset:{SB}
            v_bfi_b32 v{n}, s35, v{T2}, v{n}
            ''')
    for r in range(6):
        I(f's_waitcnt vmcnt({21 - 2*(r+1)})')
        hist(r)
    I('s_cmp_ge_u32 s36, 2\ns_cbranch_scc1 K1_H6')
    a.opt_begin()
    I('s_waitcnt vmcnt(7)\ns_mov_b64 exec, s[60:61]')
    hist(6)
    I('s_mov_b64 exec, -1')
    a.opt_end()
    a.label('K1_H6')
    I('s_waitcnt lgkmcnt(0)\ns_barrier')
    I(f's_cmp_ge_u32 s36, {S}\ns_cbranch_scc1 K1_SCANDONE')
    a.opt_begin()
    C = 84
    I(f'''
    v_and_b32 v{T0}, 63, v0
    v_lshlrev_b32 v{T0}, 4, v{T0}
    ds_read_b128 v[{C}:{C+3}], v1 offset:{SB}
    ''')
    for sp in range(S-1):
        I(f'ds_read_b128 v[{C+4+4*sp}:{C+7+4*sp}], v{T0} offset:{SB + sp*1024}')
    I(f's_waitcnt lgkmcnt(0)\nv_mov_b32 v{T1}, 0')
    for sp in range(S-1):
        b = C+4+4*sp
        I(f'''
        s_cmp_gt_u32 s36, {sp}
        s_cselect_b32 s62, 0x10000, 0
        v_add3_u32 v{b}, v{b}, v{b+1}, v{b+2}
        v_add_u32 v{b}, v{b}, v{b+3}
        v_mad_u32_u24 v{T1}, v{b}, s62, v{T1}
        ''')
    I(f'''
    v_add3_u32 v{T2}, v{C}, v{C+1}, v{C+2}
    v_add_u32 v{T2}, v{T2}, v{C+3}
    v_add_u32 v{T1}, v{T1}, v{T2}
    v_add_u32_dpp v{T1}, v{T1}, v{T1} row_shr:1 row_mask:0xf bank_mask:0xf bound_ctrl:0
    v_add_u32_dpp v{T1}, v{T1}, v{T1} row_shr:2 row_mask:0xf bank_mask:0xf bound_ctrl:0
    v_add_u32_dpp v{T1}, v{T1}, v{T1} row_shr:4 row_mask:0xf bank_mask:0xf bound_ctrl:0
    v_add_u32_dpp v{T1}, v{T1}, v{T1} row_shr:8 row_mask:0xf bank_mask:0xf bound_ctrl:0
    v_add_u32_dpp v{T1}, v{T1}, v{T1} row_bcast:15 row_mask:0xa bank_mask:0xf
    v_add_u32_dpp v{T1}, v{T1}, v{T1} row_bcast:31 row_mask:0xc bank_mask:0xf
    v_readlane_b32 s62, v{T1}, 63
    v_and_b32 v{T1}, 0xffff, v{T1}
    s_lshr_b32 s62, s62, 16
    v_sub_u32 v{T1}, v{T1}, v{T2}
    v_add_u32 v{C+4}, s62, v{T1}
    v_add_u32 v{C+5}, v{C+4}, v{C}
    v_add_u32 v{C+6}, v{C+5}, v{C+1}
    v_add_u32 v{C+7}, v{C+6}, v{C+2}
    v_add_u32 v{C+8}, v{C+7}, v{C+3}
    v_mov_b32 v{T3}, {SB - 2}
    s_lshl_b32 s62, s36, 1
    v_mad_u32_u24 v{C}, v{C+4}, 6, v{T3}
    v_mad_u32_u24 v{C+1}, v{C+5}, 6, v{T3}
    v_mad_u32_u24 v{C+2}, v{C+6}, 6, v{T3}
    v_mad_u32_u24 v{C+3}, v{C+7}, 6, v{T3}
    v_lshl_add_u32 v{T0}, v{T0}, 2, s62
    ds_write_b128 v1, v[{C}:{C+3}]
    ''')
    for i in range(5):
        I(f'ds_write_b16 v{T0}, v{C+4+i} offset:{TIMG + 16*i}')
    I('s_waitcnt lgkmcnt(0)')
    a.opt_end()
    a.label('K1_SCANDONE')
    I('s_barrier')
    I(f's_cmp_ge_u32 s36, 5\ns_cbranch_scc1 K1_TDONE')
    a.opt_begin()
    I(f'''
    ds_read_b128 v[{C}:{C+3}], v1 offset:{TIMG}
    s_waitcnt lgkmcnt(0)
    buffer_store_dwordx4 v[{C}:{C+3}], v1, s[28:31], 0 offen
    ''')
    a.opt_end()
    a.label('K1_TDONE')
    def atom(r):
        for e in range(4): I(f'ds_add_rtn_u32 v{O(r,e)}, v{O(r,e)}, v5')
    def scat(r):
        for e in range(4):
            o, n = O(r, e), N(r, e)
            t, u = (T0, T1) if e & 1 else (T2, T3)
            I(f'''
            v_and_b32 v{t}, -4, v{o}
            v_and_b32 v{u}, 2, v{o}
            ds_write_b32 v{t}, v{n} offset:4
            v_lshl_add_u32 v{u}, v{u}, 1, v{o}
            {'ds_write_b16_d16_hi' if e & 1 else 'ds_write_b16'} v{u}, v{A(r, e>>1)} offset:2
            ''')
    atom(0)
    I('s_waitcnt vmcnt(0)')
    for r in range(6):
        if r < 5:
            atom(r+1); I('s_waitcnt lgkmcnt(4)')
        else:
            I('s_waitcnt lgkmcnt(0)')
        scat(r)
    I('s_cmp_ge_u32 s36, 2\ns_cbranch_scc1 K1_S6')
    a.opt_begin()
    I('s_mov_b64 exec, s[60:61]')
    atom(6)
    I('s_waitcnt lgkmcnt(0)')
    scat(6)
    I('s_mov_b64 exec, -1')
    a.opt_end()
    a.label('K1_S6')
    I(f'''
    v_add_u32 v2, {SB}, v1
    v_add_u32 v3, {SB + 65536}, v1
    v_add_u32 v4, {SB + 131072}, v1
    v_add_u32 v5, {9*16384}, v1
    s_waitcnt lgkmcnt(0)
    s_barrier
    ''')
    for r in range(9):
        I(f'ds_read_b128 v[{8+4*r}:{11+4*r}], v{2 + r//4} offset:{(r%4)*16384}')
    for r in range(9):
        I(f's_waitcnt lgkmcnt({8-r})')
        I(f'buffer_store_dwordx4 v[{8+4*r}:{11+4*r}], v1, s[24:27], {soff(r*16384)} offen {K1_ST}')
    I('s_cmp_ge_u32 s36, 3\ns_cbranch_scc1 K1_END')
    I(f'''
    ds_read_b128 v[44:47], v4 offset:16384
    s_waitcnt lgkmcnt(0)
    buffer_store_dwordx4 v[44:47], v5, s[24:27], 0 offen {K1_ST}
    ''')
    a.label('K1_END')
    I('s_endpgm')
    return name, 112, 72
```

```python
from asmlib import Asm
from params import *

CNT, FLAG, WST, LIST, RB = 0, 1024, 1088, 3136, 11328
BUF0 = RB + BK*16
UB = 320
BUFSZ = 196*UB
BUF1 = BUF0 + BUFSZ
K2_LDS = BUF1 + BUFSZ + UB
assert K2_LDS <= 163840
NW = 13
NSLOT = 5
LISTCAP = 64

V0, V1 = 0, 1
VT = 2
W1A, W1B = 4, 8
G = [12, 16, 20, 24]
R = [28, 32, 36, 40, 44]
VL, VAIDX, VAOWN, VAC, VCNT = 31, 35, 39, 43, 47
OWN, CC, D1B = 48, 52, 56
TMP = 60
K_ = [60, 64]; UBR = [61, 65]; PK = [62, 66]; OW = [63, 67]
G4 = 60
VIDX, VD0, VD1, VOFF, VREM, VTWO, VLANE = 68, 69, 70, 71, 72, 73, 74
VSP = 75
ACC = 76
def acc(j): return ACC + 4*j
def gbuf(j): return G4 if j == 12 else G[j % 4]

sBK, sW, sUB, sY, sDX, sIT, sCAR, sSLOW, s320, sMASK, s257, sLB, sFLAG, sNUN, sN = 3, 24, 25, 26, 27, 28, 29, 30, 31, 32, 33, 34, 35, 36, 37
sT0, sT1 = 38, 39
M0 = lambda q: f's[{40+4*q}:{41+4*q}]'
M1_ = lambda q: f's[{42+4*q}:{43+4*q}]'
MC = 's[60:61]'
P0, P1, P2 = 's[62:63]', 's[64:65]', 's[66:67]'
MLONG = 's[68:69]'
sCEN = 72
SRD_M, SRD_R, SRD_O, SRD_T = 's[8:11]', 's[12:15]', 's[16:19]', 's[20:23]'
SDWA_B3 = 'dst_sel:DWORD dst_unused:UNUSED_PAD src0_sel:DWORD src1_sel:BYTE_3'
DPPM = 'row_mask:0xf bank_mask:0xf'

def gen_k2(a: Asm, name):
    I = a.I
    rare = []
    r4 = lambda b: f'v[{b}:{b+3}]'
    r2 = lambda b: f'v[{b}:{b+1}]'

    def ins_a0(rec, i):
        I(f'v_lshlrev_b32_sdwa v{K_[i]}, 2, v{rec} {SDWA_B3}')
    def ins_a1(rec, i, mask):
        I(f'''
        s_mov_b64 exec, {mask}
        ds_add_rtn_u32 v{K_[i]}, v{K_[i]}, v{VTWO} offset:{CNT}
        ''')
    def ins_a2(rec, i):
        I(f'''
        v_mul_u32_u24_sdwa v{UBR[i]}, s{s320}, v{rec} {SDWA_B3}
        v_and_b32 v{OW[i]}, 7, v{rec}
        v_mul_u32_u24 v{OW[i]}, s{s257}, v{OW[i]}
        ''')
    def ins_cos2(aa):
        p0, p1 = PK
        I(f'''
        v_lshlrev_b32 v{p0}, 16, v{aa}
        v_and_b32 v{p1}, 0xffff0000, v{aa}
        v_mul_f32 v{p0}, 0.15915494, v{p0}
        v_mul_f32 v{p1}, 0.15915494, v{p1}
        v_fract_f32 v{p0}, v{p0}
        v_fract_f32 v{p1}, v{p1}
        v_cos_f32 v{p0}, v{p0}
        v_cos_f32 v{p1}, v{p1}
        v_fma_f32 v{V0}, v{p0}, v{p0}, -0.5
        v_fma_f32 v{V1}, v{p1}, v{p1}, -0.5
        v_cvt_pk_bf16_f32 v{p0}, v{p0}, v{V0}
        v_cvt_pk_bf16_f32 v{p1}, v{p1}, v{V1}
        ''')
    def ins_b(rec, pk, i, mask, pend=None):
        k, ub, ow = K_[i], UBR[i], OW[i]
        I(f'''
        s_mov_b64 exec, {mask}
        v_cmp_gt_u32 vcc, 64, v{k}
        v_add3_u32 v{ub}, v{ub}, v{k}, s{sY}
        ''')
        if pend is None:
            lr, lb = a.newlabel('RARE'), a.newlabel('BACK')
            I(f's_andn2_b64 {P0}, {mask}, vcc\ns_cbranch_scc1 {lr}')
            a.label(lb)
            def gen():
                a.label(lr); a.reset()
                I(f'''
                s_nop 4
                s_bcnt1_i32_b64 s{sT0}, {P0}
                s_add_u32 s{sT0}, s{sT0}, s{sCAR}
                s_cmp_gt_u32 s{sT0}, {LISTCAP}
                s_cselect_b32 s{sSLOW}, 1, s{sSLOW}
                s_cbranch_scc1 {lb}
                s_mov_b64 exec, {P0}
                v_mbcnt_lo_u32_b32 v{VSP}, s62, 0
                v_mbcnt_hi_u32_b32 v{VSP}, s63, v{VSP}
                v_add_lshl_u32 v{VSP}, v{VSP}, s{sCAR}, 3
                v_add_u32 v{VSP}, s{sLB}, v{VSP}
                s_mov_b32 s{sCAR}, s{sT0}
                ds_write2_b32 v{VSP}, v{rec}, v{pk} offset0:0 offset1:1
                s_nop 1
                s_branch {lb}
                ''')
            rare.append(gen)
        else:
            I(f's_andn2_b64 {pend}, {mask}, vcc')
        I(f'''
        s_mov_b64 exec, vcc
        v_add_u32 v{k}, v{ub}, v{k}
        ds_write_b16 v{ub}, v{pk} offset:128
        ds_write_b16_d16_hi v{ub}, v{pk} offset:192
        ds_write_b16 v{ub}, v{ow} offset:256
        ds_write_b32 v{k}, v{rec}
        ''')
    def slot_a(rb, m0, m1):
        ins_a0(rb, 0); ins_a0(rb+2, 1); ins_a1(rb, 0, m0); ins_a1(rb+2, 1, m1)
        I('s_mov_b64 exec, -1')
        ins_cos2(rb+1); ins_a2(rb, 0); ins_a2(rb+2, 1)
    def slot_b(rb, m0, m1, pend=(None, None)):
        ins_b(rb, PK[0], 0, m0, pend[0]); ins_b(rb+2, PK[1], 1, m1, pend[1])
        I('s_mov_b64 exec, -1')

    def setup():
        I(f'''
        v_and_b32 v{V1}, 3, v{VLANE}
        s_sub_u32 s{sT0}, s{sN}, 4
        v_cmp_eq_u32 vcc, s{sN}, v{V1}
        v_cndmask_b32 v{V0}, 0, v{VD0}, vcc
        v_cmp_eq_u32 vcc, s{sT0}, v{V1}
        v_cndmask_b32 v{V0}, v{V0}, v{VD1}, vcc
        v_or_b32_dpp v{V0}, v{V0}, v{V0} quad_perm:[1,0,3,2] {DPPM}
        v_or_b32_dpp v{V0}, v{V0}, v{V0} quad_perm:[2,3,0,1] {DPPM}
        s_lshl_b32 s{sT0}, s{sW}, 4
        s_mov_b32 s{sT1}, {CSTRIDE}
        v_bfe_u32 v{VOFF}, v{V0}, 1, 15
        v_add_u32 v{V1}, v{VOFF}, v{V1}
        v_lshrrev_b32 v{VOFF}, 2, v{VLANE}
        v_add_u32 v{VOFF}, s{sT0}, v{VOFF}
        v_mul_u32_u24 v{VOFF}, s{sT1}, v{VOFF}
        v_mad_u32_u24 v{VOFF}, v{V1}, 12, v{VOFF}
        v_lshlrev_b32 v{V1}, 1, v{V1}
        v_lshrrev_b32 v{VREM}, 16, v{V0}
        v_and_b32 v{V0}, 0xffff, v{V0}
        v_sub_u32 v{VREM}, v{VREM}, v{V1}
        v_cmp_ge_u32 {P2}, v{V1}, v{V0}
        ''')
    def rloads():
        for q in range(NSLOT):
            t = V0 if q & 1 else V1
            I(f'''
            v_cmp_lt_i32 {M0(q)}, {8*q}, v{VREM}
            v_cmp_lt_i32 {M1_(q)}, {8*q+1}, v{VREM}
            v_cndmask_b32 v{t}, -1, v{VOFF}, {M0(q)}
            buffer_load_dwordx3 v[{R[q]}:{R[q]+2}], v{t}, {SRD_R}, 0 offen offset:{48*q}
            ''')
        I(f'''
        s_and_b64 {M0(0)}, {M0(0)}, {P2}
        v_cmp_lt_i32 {MLONG}, {8*NSLOT}, v{VREM}
        ''')
    def longcheck():
        ll, lb = a.newlabel('LONG'), a.newlabel('LBACK')
        I(f's_cmp_lg_u64 {MLONG}, 0\ns_cbranch_scc1 {ll}')
        a.label(lb)
        def gen():
            a.label(ll); a.reset()
            I(f'''
            s_nop 7
            v_add_u32 v{VOFF}, {48*NSLOT}, v{VOFF}
            v_subrev_u32 v{VREM}, {8*NSLOT}, v{VREM}
            ''')
            lp = a.newlabel('LLOOP')
            a.flush(); a.label(lp)
            I(f'''
            v_cmp_lt_i32 {M0(0)}, 0, v{VREM}
            v_cmp_lt_i32 {M1_(0)}, 1, v{VREM}
            v_cndmask_b32 v{V0}, -1, v{VOFF}, {M0(0)}
            buffer_load_dwordx3 v[{R[0]}:{R[0]+2}], v{V0}, {SRD_R}, 0 offen
            v_add_u32 v{VOFF}, 48, v{VOFF}
            v_subrev_u32 v{VREM}, 8, v{VREM}
            s_waitcnt vmcnt(0)
            ''')
            slot_a(R[0], M0(0), M1_(0))
            I('s_waitcnt lgkmcnt(0)')
            slot_b(R[0], M0(0), M1_(0))
            I(f'''
            v_cmp_lt_i32 vcc, 0, v{VREM}
            s_cmp_lg_u32 s{sSLOW}, 0
            s_cbranch_scc1 {lb}
            ''')
            a.flush()
            I(f's_cbranch_vccnz {lp}\ns_branch {lb}')
        rare.append(gen)

    def read_counts():
        I(f'''
        v_and_b32 v{V0}, 15, v{VLANE}
        v_add_lshl_u32 v{VSP}, v{V0}, s{sUB}, 2
        v_mov_b32 v{V1}, 0
        ds_read_b32 v{VCNT}, v{VSP} offset:{CNT}
        ''')
    def fix_counts():
        I(f'''
        v_cmp_gt_u32 vcc, s{sNUN}, v{V0}
        v_min_u32 v{VCNT}, 64, v{VCNT}
        v_mov_b32 v{V1}, 0
        v_lshlrev_b32 v{VCNT}, 4, v{VCNT}
        v_cndmask_b32 v{VCNT}, 0, v{VCNT}, vcc
        s_and_b64 exec, vcc, 0xffff
        ds_write_b32 v{VSP}, v{V1} offset:{CNT}
        s_mov_b64 exec, -1
        ''')
    def gather(j, gb):
        I(f'''
        v_sub_u32_dpp v{V1}, v{VCNT}, v{VL} row_newbcast:{j} {DPPM}
        v_bfi_b32 v{VIDX}, s{sMASK}, v{VIDX}, v{V1}
        buffer_load_dwordx4 {r4(gb)}, v{VIDX}, {SRD_M}, 0 offen
        ''')
    def a2build():
        for i in range(4): I(f'v_perm_b32 v{OWN+i}, v{VT+1}, v{VT}, v{OWN+i}')
        for i in range(4): I(f'v_and_b32 v{CC+i}, v{CC+i}, v{OWN+i}')
    def mfma1(gb):
        I(f'''
        v_mfma_f32_16x16x32_bf16 {r4(OWN)}, {r4(gb)}, {r4(W1A)}, 0
        v_mfma_f32_16x16x32_bf16 {r4(D1B)}, {r4(gb)}, {r4(W1B)}, 0
        ''')
    def mfma2(j):
        I(f'''
        v_cvt_pk_bf16_f32 v{OWN}, v{OWN}, v{OWN+1}
        v_cvt_pk_bf16_f32 v{OWN+1}, v{OWN+2}, v{OWN+3}
        v_cvt_pk_bf16_f32 v{OWN+2}, v{D1B}, v{D1B+1}
        v_cvt_pk_bf16_f32 v{OWN+3}, v{D1B+2}, v{D1B+3}
        v_mfma_f32_16x16x32_bf16 {r4(acc(j))}, {r4(OWN)}, {r4(CC)}, {r4(acc(j))}
        ''')
    def set_addr(buf):
        I(f'''
        s_mul_i32 s{sT0}, s{sUB}, {UB}
        s_add_u32 s{sT0}, s{sT0}, {buf}
        v_lshrrev_b32 v{V0}, 4, v{VLANE}
        v_lshlrev_b32 v{V0}, 4, v{V0}
        v_add_u32 v{VAOWN}, s{sT0}, v{V0}
        v_and_b32 v{V1}, 8, v{VLANE}
        v_lshl_add_u32 v{VAC}, v{V1}, 3, v{VAOWN}
        v_add_u32 v{V0}, 16, v{VL}
        v_lshrrev_b32 v{V0}, 5, v{V0}
        v_subrev_u32 v{V0}, 1, v{V0}
        v_lshl_add_u32 v{VAIDX}, v{V0}, 2, s{sT0}
        ''')
    def load_desc():
        I(f'''
        s_lshl_b32 s{sT0}, s{sW}, 4
        s_mov_b32 s{sT1}, {TSTRIDE}
        v_lshrrev_b32 v{V0}, 2, v{VLANE}
        v_add_u32 v{V0}, s{sT0}, v{V0}
        v_mul_u32_u24 v{V0}, s{sT1}, v{V0}
        v_and_b32 v{V1}, 3, v{VLANE}
        s_lshl_b32 s{sT0}, s{sBK}, 4
        v_lshl_add_u32 v{V0}, v{V1}, 1, v{V0}
        v_add_u32 v{V0}, s{sT0}, v{V0}
        v_add_u32 v{V0}, {TBL_OFF}, v{V0}
        buffer_load_ushort v{VD0}, v{V0}, {SRD_R}, 0 offen
        buffer_load_ushort v{ACC}, v{V0}, {SRD_R}, 0 offen offset:16
        buffer_load_ushort v{VD1}, v{V0}, {SRD_R}, 0 offen offset:8
        buffer_load_ushort v{ACC+1}, v{V0}, {SRD_R}, 0 offen offset:24
        ''')
    def pack_desc():
        I(f'''
        v_and_b32 v{V1}, 3, v{VLANE}
        v_lshl_or_b32 v{VD0}, v{ACC}, 16, v{VD0}
        v_lshl_or_b32 v{VD1}, v{ACC+1}, 16, v{VD1}
        v_cmp_gt_i32 vcc, {S}, v{V1}
        v_cndmask_b32 v{VD0}, 0, v{VD0}, vcc
        v_cmp_gt_i32 vcc, {S-4}, v{V1}
        v_cndmask_b32 v{VD1}, 0, v{VD1}, vcc
        ''')
    MREG = [R[0], R[1], R[2], R[3], R[4], 64, 66]
    def mloads():
        I(f'''
        s_mul_i32 s{sT0}, s{sBK}, {BK*32}
        s_lshl_b32 s{sT1}, s{sUB}, 8
        s_add_u32 s{sT0}, s{sT0}, s{sT1}
        v_and_b32 v{VOFF}, 15, v{VLANE}
        v_lshrrev_b32 v{V0}, 4, v{VLANE}
        v_lshlrev_b32 v{VOFF}, 5, v{VOFF}
        v_lshl_add_u32 v{VOFF}, v{V0}, 3, v{VOFF}
        v_add_u32 v{VOFF}, s{sT0}, v{VOFF}
        ''')
        for p in range(7):
            I(f'buffer_load_dwordx2 {r2(MREG[p])}, v{VOFF}, {SRD_M}, 0 offen offset:{512*p}')

    a.raw(f'.globl {name}\n.p2align 8\n.type {name},@function')
    a.label(name); a.reset()
    I(f'''
    s_cmp_ge_u32 s2, {NB}
    s_cbranch_scc1 K2_END
    s_load_dwordx2 s[8:9], s[0:1], 0
    s_load_dwordx2 s[12:13], s[0:1], 104
    s_load_dwordx2 s[16:17], s[0:1], 88
    s_load_dwordx2 s[20:21], s[0:1], 24
    s_load_dwordx2 s[4:5], s[0:1], 40
    s_load_dwordx8 s[80:87], s[0:1], 56
    v_lshrrev_b32 v{V1}, 6, v0
    v_and_b32 v{VLANE}, 63, v0
    v_mov_b32 v{VSP}, v0
    v_readfirstlane_b32 s{sW}, v{V1}
    s_and_b32 s{sBK}, s2, 7
    s_lshl_b32 s{sBK}, s{sBK}, 5
    s_lshr_b32 s{sT0}, s2, 3
    s_add_u32 s{sBK}, s{sBK}, s{sT0}
    s_mov_b32 s10, {E*32}
    s_mov_b32 s11, 0x20000
    s_mov_b32 s14, {TBL_OFF + NCH*TSTRIDE}
    s_mov_b32 s15, 0x20000
    s_mov_b32 s18, {E*32}
    s_mov_b32 s19, 0x20000
    s_mov_b32 s22, {E*2}
    s_mov_b32 s23, 0x20000
    s_mul_i32 s{sUB}, s{sW}, 12
    s_min_u32 s{sT0}, s{sW}, 4
    s_add_u32 s{sUB}, s{sUB}, s{sT0}
    s_cmp_lt_u32 s{sW}, 4
    s_cselect_b32 s{sNUN}, 13, 12
    s_mov_b32 s{s320}, {UB}
    s_mov_b32 s{sMASK}, 0x00ffffe0
    s_mov_b32 s{s257}, 257
    s_lshl_b32 s{sLB}, s{sW}, 9
    s_add_u32 s{sLB}, s{sLB}, {LIST}
    s_mov_b32 s{sCAR}, 0
    s_mov_b32 s{sSLOW}, 0
    s_mov_b32 s{sIT}, 0
    s_waitcnt lgkmcnt(0)
    s_load_dwordx4 s[88:91], s[4:5], 0
    ''')
    load_desc()
    DV = ACC + 2
    WV = ACC + 4
    SV = ACC + 12
    I(f'''
    s_mul_i32 s{sT0}, s{sBK}, {BK*2}
    v_lshl_add_u32 v{V0}, v{VSP}, 1, s{sT0}
    buffer_load_ushort v{DV}, v{V0}, {SRD_T}, 0 offen
    buffer_load_ushort v{DV+1}, v{V0}, {SRD_T}, 0 offen offset:2048
    s_mov_b32 s92, s84
    s_mov_b32 s93, s85
    s_mov_b32 s94, 512
    s_mov_b32 s95, 0x20000
    v_and_b32 v{V0}, 15, v{VLANE}
    v_and_b32 v{V1}, 16, v{VLANE}
    v_lshlrev_b32 v{V0}, 1, v{V0}
    v_lshl_add_u32 v{V1}, v{V1}, 4, v{V0}
    ''')
    for j in range(8):
        I(f'buffer_load_ushort v{WV+j}, v{V1}, s[92:95], 0 offen offset:{32*j}')
    I(f'''
    s_and_b32 s{sT0}, s{sW}, 3
    s_cmp_lt_u32 s{sT0}, 2
    s_cselect_b32 s96, s82, s80
    s_cselect_b32 s97, s83, s81
    s_cselect_b32 s{sT1}, 64, 32
    s_lshl_b32 s98, s{sT1}, 3
    s_cmp_eq_u32 s{sT0}, 3
    s_cselect_b32 s96, s86, s96
    s_cselect_b32 s97, s87, s97
    s_cselect_b32 s98, 512, s98
    s_mov_b32 s99, 0x20000
    s_cmp_eq_u32 s{sT0}, 1
    s_cselect_b32 s70, 32, 0
    s_cselect_b32 s71, 2.0, 1.0
    v_lshrrev_b32 v{V1}, 4, v{VLANE}
    v_lshlrev_b32 v{V1}, 2, v{V1}
    v_mad_u32_u24 v{V1}, v{V1}, s{sT1}, v{V0}
    v_add_u32 v{V1}, s70, v{V1}
    ''')
    for j in range(4):
        I(f'buffer_load_ushort v{SV+j}, v{V1}, s[96:99], 0 offen')
        if j < 3: I(f'v_add_u32 v{V1}, s{sT1}, v{V1}')
    Z = ACC + 16
    I(f'''
    v_mov_b32 v{Z}, 0
    v_mov_b32 v{Z+1}, 0
    v_mov_b32 v{Z+2}, 0
    v_mov_b32 v{Z+3}, 0
    v_lshlrev_b32 v{V0}, 4, v{VSP}
    v_add_u32 v{V1}, {BUF0 + 65536}, v{V0}
    v_add_u32 v{V0}, {BUF0}, v{V0}
    v_lshlrev_b32 v{Z+4}, 1, v{VSP}
    ''')
    for r in range(8):
        I(f'ds_write_b128 v{V0 if r < 4 else V1}, {r4(Z)} offset:{(r%4)*16384}')
    I(f'''
    v_cmp_gt_u32 vcc, {WST//2}, v{VSP}
    s_mov_b64 exec, vcc
    ds_write_b16 v{Z+4}, v{Z}
    s_mov_b64 exec, -1
    v_mov_b32 v{VTWO}, 2
    ''')
    I(f'''
    v_and_b32 v{V0}, 12, v{VLANE}
    v_and_b32 v{V1}, 3, v{VLANE}
    v_lshl_add_u32 v{V0}, v{V0}, 1, v{V1}
    v_lshrrev_b32 v{V1}, 5, v{VLANE}
    v_lshl_add_u32 v{V0}, v{V1}, 2, v{V0}
    v_add_u32 v{V0}, 1, v{V0}
    v_lshlrev_b32 v{V0}, 5, v{V0}
    v_and_b32 v{V1}, 16, v{VLANE}
    v_sub_u32 v{VL}, v{V0}, v{V1}
    v_and_b32 v{V0}, 7, v{VLANE}
    v_lshlrev_b32 v{V0}, 3, v{V0}
    v_mov_b32 v{VT}, 0xff
    v_mov_b32 v{VT+1}, 0
    v_lshlrev_b64 v[{VT}:{VT+1}], v{V0}, v[{VT}:{VT+1}]
    ''')
    set_addr(BUF0)
    I(f's_mov_b32 s{sY}, {BUF0}\ns_mov_b32 s{sN}, 0\ns_waitcnt vmcnt(14)')
    pack_desc(); setup(); rloads()
    I('s_waitcnt lgkmcnt(0)')
    for r in range(4):
        I(f's_lshl_b32 s{sCEN+2*r}, s{88+r}, 16\ns_and_b32 s{sCEN+2*r+1}, s{88+r}, 0xffff0000')
    I(f's_mov_b32 s{sT0}, 0xc1200000\ns_mov_b32 s{sT1}, 0x3fb8aa3b\ns_waitcnt vmcnt(17)')
    X = ACC + 24
    Y = ACC + 32
    def rnd():
        for p in range(4): I(f'v_cvt_pk_bf16_f32 v{Y+p}, v{X+2*p}, v{X+2*p+1}')
    def unp():
        for p in range(4): I(f'v_lshlrev_b32 v{X+2*p}, 16, v{Y+p}\nv_and_b32 v{X+2*p+1}, 0xffff0000, v{Y+p}')
    def rbf(dv, off):
        I(f'v_lshlrev_b32 v{dv}, 16, v{dv}')
        for r in range(8): I(f'v_subrev_f32 v{X+r}, s{sCEN+r}, v{dv}')
        rnd(); unp()
        for r in range(8): I(f'v_mul_f32 v{X+r}, v{X+r}, v{X+r}')
        rnd(); unp()
        for r in range(8): I(f'v_mul_f32 v{X+r}, s{sT0}, v{X+r}')
        rnd(); unp()
        for r in range(8): I(f'v_mul_f32 v{X+r}, s{sT1}, v{X+r}')
        for r in range(8): I(f'v_exp_f32 v{X+r}, v{X+r}')
        rnd()
        I(f'ds_write_b128 v{Z+4}, {r4(Y)} offset:{off}')
    I(f'v_lshlrev_b32 v{Z+4}, 4, v{VSP}')
    rbf(DV, RB)
    I(f's_cmp_ge_u32 s{sW}, {(BK-1024+63)//64}\ns_cbranch_scc1 K2_RB2')
    a.opt_begin()
    I(f'v_cmp_gt_u32 vcc, {BK-1024}, v{VSP}\ns_mov_b64 exec, vcc')
    rbf(DV+1, RB + 16384)
    I('s_mov_b64 exec, -1')
    a.opt_end()
    a.label('K2_RB2')
    I('s_waitcnt vmcnt(5)')
    for i in range(4):
        I(f'''
        v_lshl_or_b32 v{W1A+i}, v{WV+2*i+1}, 16, v{WV+2*i}
        v_mov_b32 v{W1B+i}, 0
        ''')
    I('s_mov_b64 exec, 0xffffffff00000000'.replace('s_mov_b64 exec, 0xffffffff00000000', 's_mov_b32 exec_lo, 0'))
    for i in range(4): I(f'v_mov_b32 v{W1B+i}, v{W1A+i}\nv_mov_b32 v{W1A+i}, 0')
    I('s_mov_b64 exec, -1')
    for j in range(4): I(f'v_lshlrev_b32 v{SV+j}, 16, v{SV+j}\nv_mul_f32 v{SV+j}, s71, v{SV+j}')
    I(f'''
    v_cvt_pk_bf16_f32 v{Y}, v{SV}, v{SV+1}
    v_cvt_pk_bf16_f32 v{Y+1}, v{SV+2}, v{SV+3}
    v_lshlrev_b32 v{V0}, 3, v{VSP}
    v_cmp_gt_u32 vcc, 256, v{VSP}
    s_mov_b64 exec, vcc
    ds_write_b64 v{V0}, {r2(Y)} offset:{WST}
    s_mov_b64 exec, -1
    ''')
    for i in range(4*NW): I(f'v_mov_b32 v{ACC+i}, 0')
    I('s_waitcnt lgkmcnt(0)\ns_barrier')
    for q in range(NSLOT):
        lb = a.newlabel('PSK')
        I(f's_or_b64 {P1}, {M0(q)}, {M1_(q)}\ns_cbranch_scc0 {lb}')
        a.opt_begin()
        I(f's_waitcnt vmcnt({NSLOT-1-q})')
        slot_a(R[q], M0(q), M1_(q))
        I('s_waitcnt lgkmcnt(0)')
        slot_b(R[q], M0(q), M1_(q))
        a.opt_end()
        a.label(lb)
    I('s_waitcnt vmcnt(0)')
    longcheck()
    I(f's_mov_b32 s{sN}, 1')
    setup(); rloads()
    I('s_waitcnt lgkmcnt(0)\ns_barrier')
    read_counts()
    for j in range(4): I(f'ds_read_b32 v{CC+j}, v{VAIDX} offset:{UB*j}')
    I('s_waitcnt lgkmcnt(0)')
    fix_counts()
    for j in range(4):
        I(f'v_mov_b32 v{VIDX}, v{CC+j}')
        gather(j, G[j])
    I(f's_mov_b32 s{sY}, {BUF1}\ns_mov_b32 s{sDX}, {BUFSZ}')
    a.flush(); a.label('K2_LOOP')
    RLSTEP = 7
    for t in range(NW):
        a.raw(f'    ; ---- step {t}')
        q = t - 2 if 2 <= t < 2 + NSLOT else None
        if t == 0:
            I('s_waitcnt lgkmcnt(0)\ns_barrier')
        if t == 9:
            lf = a.newlabel('NOFLAG')
            I(f'''
            s_lshl_b32 s{sT0}, s{sSLOW}, 8
            s_or_b32 s{sT0}, s{sT0}, s{sCAR}
            s_cmp_eq_u32 s{sIT}, {S-1}
            s_cselect_b32 s{sT0}, s{sT0}, 0
            s_cmp_eq_u32 s{sT0}, 0
            s_cbranch_scc1 {lf}
            ''')
            a.opt_begin()
            I(f'''
            v_mov_b32 v{V0}, s{sT0}
            v_mov_b32 v{V1}, 0
            s_mov_b64 exec, 1
            ds_max_u32 v{V1}, v{V0} offset:{FLAG}
            s_mov_b64 exec, -1
            ''')
            a.opt_end(); a.label(lf)
            I(f's_waitcnt lgkmcnt(0)\ns_barrier\nv_add_u32 v{VAIDX}, s{sDX}, v{VAIDX}')
            read_counts()
            I(f'ds_read_b32 v{D1B}, v{V1} offset:{FLAG}')
        jn = (t + 4) % NW
        I(f'''
        ds_read_b128 {r4(OWN)}, v{VAOWN} offset:{UB*t + 256}
        ds_read_b128 {r4(CC)}, v{VAC} offset:{UB*t + 128}
        ds_read_b32 v{VIDX}, v{VAIDX} offset:{UB*jn}
        ''')
        if t == 0:
            I(f'''
            v_lshl_add_u32 v{V0}, v{VLANE}, 3, s{sLB}
            s_cmp_eq_u32 s{sIT}, {S-1}
            s_cselect_b32 s{sT0}, 0, s{sCAR}
            ds_read_b64 {r2(K_[0])}, v{V0}
            v_cmp_gt_u32 {MC}, s{sT0}, v{VLANE}
            s_sub_u32 s{sCAR}, s{sCAR}, s{sT0}
            ''')
        def optblk(cond, body):
            lb = a.newlabel('SK')
            I(f'{cond}\ns_cbranch_scc0 {lb}')
            a.opt_begin(); body(); a.opt_end(); a.label(lb)
        if t == 1:
            def b():
                ins_a0(K_[0], 1); ins_a1(K_[0], 1, MC); I('s_mov_b64 exec, -1'); ins_a2(K_[0], 1)
            optblk(f's_cmp_lg_u64 {MC}, 0', b)
        if q is not None:
            optblk(f's_or_b64 {P1}, {M0(q)}, {M1_(q)}', lambda: slot_a(R[q], M0(q), M1_(q)))
        I('s_waitcnt lgkmcnt(0)')
        if t == 9:
            I(f'v_readfirstlane_b32 s{sFLAG}, v{D1B}')
            fix_counts()
        a2build()
        n = 3 + (NSLOT if RLSTEP < t <= RLSTEP + 4 else 0)
        I(f's_waitcnt vmcnt({n})')
        mfma1(gbuf(t))
        gather(jn, gbuf(jn))
        if t == 1:
            def b():
                ins_b(K_[0], UBR[0], 1, MC); I('s_mov_b64 exec, -1')
            optblk(f's_cmp_lg_u64 {MC}, 0', b)
        if q is not None:
            optblk(f's_or_b64 {P1}, {M0(q)}, {M1_(q)}', lambda: slot_b(R[q], M0(q), M1_(q)))
        mfma2(t)
        if t == RLSTEP:
            longcheck()
            lm, le = a.newlabel('ML'), a.newlabel('MLE')
            I(f's_add_u32 s{sN}, s{sIT}, 2\ns_cmp_eq_u32 s{sIT}, {S-1}\ns_cbranch_scc1 {lm}')
            setup(); rloads()
            a.label(le)
            def gen():
                a.label(lm); a.reset(); I('s_nop 4'); mloads(); a.flush(); I(f's_branch {le}')
            rare.append(gen)
    I(f'''
    v_add_u32 v{VAOWN}, s{sDX}, v{VAOWN}
    v_add_u32 v{VAC}, s{sDX}, v{VAC}
    s_sub_u32 s{sY}, s{sY}, s{sDX}
    s_sub_u32 s{sDX}, 0, s{sDX}
    s_add_u32 s{sIT}, s{sIT}, 1
    s_cmp_lt_u32 s{sIT}, {S}
    ''')
    a.flush()
    I('s_cbranch_scc1 K2_LOOP')
    I(f's_cmp_lg_u32 s{sFLAG}, 0\ns_cbranch_scc1 K2_GEN')
    a.label('K2_EPI')
    WG0, WG1, WR, WU = 4, 6, 8, 10
    RBV = [12, 14, 16, 18, 20, 22, 24]
    I(f'''
    s_waitcnt vmcnt(0)
    v_lshlrev_b32 v{V0}, 3, v{VLANE}
    ds_read_b64 {r2(WG0)}, v{V0} offset:{WST}
    ds_read_b64 {r2(WG1)}, v{V0} offset:{WST+512}
    ds_read_b64 {r2(WR)}, v{V0} offset:{WST+1024}
    ds_read_b64 {r2(WU)}, v{V0} offset:{WST+1536}
    s_lshl_b32 s{sT0}, s{sUB}, 7
    v_and_b32 v{V0}, 15, v{VLANE}
    v_and_b32 v{V1}, 16, v{VLANE}
    v_lshlrev_b32 v{V0}, 4, v{V0}
    v_lshrrev_b32 v{V1}, 1, v{V1}
    v_add3_u32 v{V0}, v{V0}, v{V1}, s{sT0}
    ''')
    for p in range(7): I(f'ds_read_b64 {r2(RBV[p])}, v{V0} offset:{RB + 256*p}')
    I('s_waitcnt lgkmcnt(0)')
    GA, GB, RR, UU = 48, 52, 56, 60
    AG = 68
    AG = [2, 3, 26, 27]
    def pair(p):
        A_, B_ = acc(2*p), acc(2*p+1) if p < 6 else acc(2*p)
        I(f'''
        v_mfma_f32_16x16x16_bf16 {r4(GA)}, {r2(WG0)}, {r2(RBV[p])}, 0
        v_mfma_f32_16x16x16_bf16 {r4(GB)}, {r2(WG1)}, {r2(RBV[p])}, 0
        v_mfma_f32_16x16x16_bf16 {r4(RR)}, {r2(WR)}, {r2(RBV[p])}, 0
        ''')
        for r in range(4): I(f'v_mul_f32 v{AG[r]}, v{A_+r}, v{GA+r}')
        for r in range(4): I(f'v_mul_f32_dpp v{AG[r]}, v{B_+r}, v{GA+r} row_ror:8 row_mask:0xf bank_mask:0xc')
        for r in range(4): I(f'v_fmac_f32_dpp v{AG[r]}, v{A_+r}, v{GB+r} row_ror:8 row_mask:0xf bank_mask:0x3')
        for r in range(4): I(f'v_fmac_f32_dpp v{AG[r]}, v{B_+r}, v{GB+r} quad_perm:[0,1,2,3] row_mask:0xf bank_mask:0xc')
        m = MREG[p]
        I(f'''
        v_cvt_pk_bf16_f32 v{AG[0]}, v{AG[0]}, v{AG[1]}
        v_cvt_pk_bf16_f32 v{AG[1]}, v{AG[2]}, v{AG[3]}
        v_mfma_f32_16x16x16_bf16 {r4(UU)}, {r2(WU)}, {r2(AG[0])}, 0
        v_lshlrev_b32 v{GA}, 16, v{m}
        v_and_b32 v{GA+1}, 0xffff0000, v{m}
        v_lshlrev_b32 v{GA+2}, 16, v{m+1}
        v_and_b32 v{GA+3}, 0xffff0000, v{m+1}
        ''')
        for r in range(4): I(f'v_fmac_f32 v{GA+r}, v{UU+r}, v{RR+r}')
        I(f'''
        v_cvt_pk_bf16_f32 v{m}, v{GA}, v{GA+1}
        v_cvt_pk_bf16_f32 v{m+1}, v{GA+2}, v{GA+3}
        ''')
        if p == 6: I('s_mov_b32 exec_lo, 0x00ff00ff\ns_mov_b32 exec_hi, 0x00ff00ff')
        I(f'buffer_store_dwordx2 {r2(m)}, v{VOFF}, {SRD_O}, 0 offen offset:{512*p}')
    for p in range(6): pair(p)
    I(f's_cmp_ge_u32 s{sW}, 4\ns_cbranch_scc1 K2_END')
    pair(6)
    a.label('K2_END')
    I('s_endpgm')
    a.label('K2_GEN'); a.reset()
    PD0, PD1 = M0(1), M1_(1)
    sSRC, sPAR = sIT, sDX
    I(f's_waitcnt vmcnt(0) lgkmcnt(0)\ns_nop 7')
    set_addr(BUF0)
    I(f'''
    s_mov_b32 s{sY}, {BUF0}
    s_mov_b32 s{sPAR}, 0
    s_mov_b64 {PD1}, 0
    s_cmp_ge_u32 s{sFLAG}, 0x100
    s_cbranch_scc1 K2_GSLOW
    v_lshl_add_u32 v{V0}, v{VLANE}, 3, s{sLB}
    ds_read_b32 v{R[0]}, v{V0}
    ds_read_b32 v{PK[0]}, v{V0} offset:4
    v_cmp_gt_u32 {PD0}, s{sCAR}, v{VLANE}
    s_mov_b32 s{sSRC}, {S}
    s_waitcnt lgkmcnt(0)
    s_barrier
    s_branch K2_GINS
    ''')
    a.label('K2_GSLOW'); a.reset()
    for i in range(4*NW): I(f'v_mov_b32 v{ACC+i}, 0')
    I(f'''
    s_mov_b64 {PD0}, 0
    s_mov_b32 s{sSRC}, 0
    s_mov_b32 s{sN}, 0
    ''')
    setup()
    I('s_barrier')
    a.flush(); a.label('K2_GTOP')
    I(f'''
    s_or_b64 {P1}, {PD0}, {PD1}
    s_cbranch_scc1 K2_GINS
    ''')
    a.label('K2_GNEXT')
    I(f'''
    s_cmp_ge_u32 s{sSRC}, {S}
    s_cbranch_scc1 K2_GINS
    v_cmp_lt_i32 {PD0}, 0, v{VREM}
    s_cmp_lg_u64 {PD0}, 0
    s_cbranch_scc1 K2_GFETCH
    s_add_u32 s{sSRC}, s{sSRC}, 1
    s_mov_b32 s{sN}, s{sSRC}
    ''')
    setup()
    a.flush()
    I('s_branch K2_GNEXT')
    a.label('K2_GFETCH'); a.reset()
    I(f'''
    s_nop 4
    v_cmp_lt_i32 {PD1}, 1, v{VREM}
    v_cndmask_b32 v{V0}, -1, v{VOFF}, {PD0}
    buffer_load_dwordx3 v[{R[0]}:{R[0]+2}], v{V0}, {SRD_R}, 0 offen
    s_and_b64 {PD0}, {PD0}, {P2}
    s_mov_b64 {P2}, -1
    v_add_u32 v{VOFF}, 48, v{VOFF}
    v_subrev_u32 v{VREM}, 8, v{VREM}
    s_waitcnt vmcnt(0)
    ''')
    ins_cos2(R[0]+1)
    a.flush(); a.label('K2_GINS')
    I(f's_mov_b64 {M0(0)}, {PD0}\ns_mov_b64 {M1_(0)}, {PD1}')
    ins_a0(R[0], 0); ins_a0(R[0]+2, 1); ins_a1(R[0], 0, M0(0)); ins_a1(R[0]+2, 1, M1_(0))
    I('s_mov_b64 exec, -1')
    ins_a2(R[0], 0); ins_a2(R[0]+2, 1)
    I('s_waitcnt lgkmcnt(0)')
    slot_b(R[0], M0(0), M1_(0), (PD0, PD1))
    I(f'''
    s_or_b64 {P1}, {PD0}, {PD1}
    s_cselect_b32 s{sT0}, 1, 0
    s_cmp_lt_u32 s{sSRC}, {S}
    s_cselect_b32 s{sT0}, 1, s{sT0}
    v_mov_b32 v{V0}, s{sT0}
    v_mov_b32 v{V1}, s{sPAR}
    s_mov_b64 exec, 1
    ds_or_b32 v{V1}, v{V0} offset:{FLAG+8}
    s_mov_b64 exec, -1
    s_waitcnt lgkmcnt(0)
    s_barrier
    ds_read_b32 v{D1B}, v{V1} offset:{FLAG+8}
    s_xor_b32 s{sPAR}, s{sPAR}, 4
    v_mov_b32 v{D1B+1}, s{sPAR}
    v_mov_b32 v{D1B+2}, 0
    ds_write_b32 v{D1B+1}, v{D1B+2} offset:{FLAG+8}
    ''')
    read_counts()
    I(f's_waitcnt lgkmcnt(0)\nv_readfirstlane_b32 s{sFLAG}, v{D1B}')
    fix_counts()
    I(f'v_cmp_lt_u32 {P1}, 0, v{VCNT}')
    for j in range(NW):
        lb = a.newlabel('GW')
        I(f's_bitcmp1_b32 s64, {j}\ns_cbranch_scc0 {lb}')
        a.opt_begin()
        I(f'''
        ds_read_b128 {r4(OWN)}, v{VAOWN} offset:{UB*j + 256}
        ds_read_b128 {r4(CC)}, v{VAC} offset:{UB*j + 128}
        ds_read_b32 v{VIDX}, v{VAIDX} offset:{UB*j}
        s_waitcnt lgkmcnt(0)
        ''')
        gather(j, G[0])
        a2build()
        I('s_waitcnt vmcnt(0)')
        mfma1(G[0]); mfma2(j)
        I('s_nop 7')
        a.opt_end(); a.label(lb)
    I(f'''
    s_waitcnt lgkmcnt(0)
    s_barrier
    s_cmp_lg_u32 s{sFLAG}, 0
    ''')
    a.flush()
    I('s_cbranch_scc1 K2_GTOP')
    mloads()
    a.flush()
    I('s_branch K2_EPI')
    i = 0
    while i < len(rare):
        rare[i](); i += 1
    return name, 128, 102
```

```python
import os
E = 400000
T = 6400000
NCH = 256
CH = T // NCH
BK = 1568
NB = 256
S = int(os.environ.get('GS_S', 5))
W = int(os.environ.get('GS_W', 80000))
M1 = (2**32 + BK - 1) // BK
M2 = 2**32 // W
assert ((E-1)*M2) >> 32 == S-1, ((E-1)*M2) >> 32
CSTRIDE = 150016
TSTRIDE = 4224
TBL_OFF = 40 << 20
K1_SB = S*1024 + 4128
K1_LDS = K1_SB + CH*6
assert K1_LDS <= 163840 and K1_SB % 16 == 0
K1_LD = os.environ.get('GS_K1LD', 'nt')
K1_ST = os.environ.get('GS_K1ST', '')
```

```python
import sys, os
sys.path.insert(0, os.path.dirname(os.path.abspath(__file__)))
from asmlib import Asm
from params import *
from k1 import gen_k1

KN = 'gather_scatter__molecular_angular_gemnet__graph'
HEAD = open(f'cdna_kernels/{KN}.s.ref').read().split('; Override launch')[0]

def desc(name, vg, sg):
    return f'''.section .rodata,"a"
.p2align 6
.amdhsa_kernel {name}
  .amdhsa_next_free_vgpr {vg}
  .amdhsa_next_free_sgpr {sg}
  .amdhsa_accum_offset {(vg+3)//4*4}
  .amdhsa_group_segment_fixed_size 0
  .amdhsa_kernarg_size 112
  .amdhsa_user_sgpr_count 2
  .amdhsa_user_sgpr_kernarg_segment_ptr 1
  .amdhsa_system_sgpr_workgroup_id_x 1
.end_amdhsa_kernel
'''

def main(out):
    a = Asm()
    ks = [gen_k1(a)]
    launches = [f'; @launch kernel={ks[0][0]} grid=({NCH},1,1) block=(1024,1,1) lds={K1_LDS}']
    if os.environ.get('GS_ONLY') != '1':
        import importlib
        mod = importlib.import_module(os.environ.get('GS_K2', 'k3'))
        gen_k2, K2_LDS = mod.gen_k2, mod.K2_LDS
        ks.append(gen_k2(a, KN + '_kernel'))
        launches.append(f'; @launch kernel={ks[1][0]} grid=({NB},1,1) block=(1024,1,1) lds={K2_LDS}')
    txt = HEAD + '\n'.join(launches) + '\n.amdgcn_target "amdgcn-amd-amdhsa--gfx950"\n.text\n' + a.render()
    txt += ''.join(desc(*k) for k in ks)
    open(out, 'w').write(txt)

if __name__ == '__main__':
    main(sys.argv[1] if len(sys.argv) > 1 else f'cdna_kernels/{KN}.s')
```

```python
import re

TRANS = ('v_exp_f32','v_log_f32','v_rcp_f32','v_rsq_f32','v_sqrt_f32','v_sin_f32','v_cos_f32')

def _regs(tok):
    tok = tok.strip()
    tok = re.sub(r'^(-|abs\(|sext\()+', '', tok).rstrip(')')
    m = re.fullmatch(r'([vsa])\[(\d+):(\d+)\]', tok)
    if m:
        return {f'{m.group(1)}{i}' for i in range(int(m.group(2)), int(m.group(3))+1)}
    m = re.fullmatch(r'([vsa])(\d+)', tok)
    if m:
        return {tok}
    if tok in ('vcc','vcc_lo','vcc_hi'): return {'vcc'}
    if tok in ('exec','exec_lo','exec_hi'): return {'exec'}
    if tok == 'm0': return {'m0'}
    return set()

class Ins:
    def __init__(self, text):
        self.text = text
        body = text.split(';')[0].strip()
        sp = body.split(None, 1)
        self.op = sp[0]
        rest = sp[1] if len(sp) > 1 else ''
        ops, depth, cur = [], 0, ''
        for ch in rest:
            if ch == '[': depth += 1
            if ch == ']': depth -= 1
            if ch == ',' and depth == 0:
                ops.append(cur.strip()); cur = ''
            else: cur += ch
        if cur.strip(): ops.append(cur.strip())
        self.mods = ''
        if ops:
            parts = ops[-1].split(None, 1)
            ops[-1] = parts[0]
            if len(parts) > 1: self.mods = parts[1]
        self.ops = ops
        op = self.op
        self.mfma = op.startswith('v_mfma')
        self.valu = op.startswith('v_') and not self.mfma
        self.ds = op.startswith('ds_')
        self.vmem = op.startswith('buffer_') or op.startswith('global_')
        self.salu = op.startswith('s_')
        self.trans = any(op.startswith(t) for t in TRANS)
        self.dpp = '_dpp' in op
        self.defs, self.uses = set(), set()
        self.srcC = set(); self.srcAB = set()
        R = [_regs(o) for o in ops]
        if self.mfma:
            self.defs = R[0]; self.srcAB = R[1] | R[2]; self.srcC = R[3]; self.uses = self.srcAB | self.srcC
            self.passes = 8 if '32x32' in op else 4
        elif self.valu:
            if op.startswith('v_cmpx'):
                self.defs = R[0] | {'exec'}; self.uses = set().union(*R[1:])
            elif op.startswith('v_cmp'):
                self.defs = R[0]; self.uses = set().union(*R[1:])
            elif op.startswith(('v_add_co','v_sub_co','v_addc_co','v_subb_co','v_subrev_co')):
                self.defs = R[0] | R[1]; self.uses = set().union(*R[2:])
            elif op.startswith('v_nop'):
                pass
            else:
                self.defs = R[0]; self.uses = set().union(*R[1:]) if len(R) > 1 else set()
                if op.startswith(('v_fmac','v_writelane')) or self.dpp: self.uses |= R[0]
                if op.startswith('v_permlane'): self.defs |= R[1]; self.uses |= R[0]
                if op.startswith('v_cndmask') and len(ops) == 3: self.uses |= {'vcc'}
        elif self.ds:
            if op.startswith(('ds_read','ds_bpermute','ds_permute','ds_swizzle')) or '_rtn' in op:
                self.defs = R[0]; self.uses = set().union(*R[1:])
            else:
                self.uses = set().union(*R)
        elif self.vmem:
            if '_load' in op and re.search(r'\blds\b', self.mods):
                self.uses = set().union(*R) | {'m0'}
            elif '_load' in op:
                self.defs = R[0]; self.uses = set().union(*R[1:])
            else:
                self.uses = set().union(*R)
                self.store_data = R[0] if op.startswith('buffer_') else R[1]
        elif self.salu:
            if op.startswith(('s_cmp','s_bitcmp','s_cbranch','s_branch','s_waitcnt','s_nop','s_barrier','s_endpgm','s_setprio','s_sleep','s_setpc')):
                self.uses = set().union(*R) if R else set()
            else:
                self.defs = R[0] if R else set(); self.uses = set().union(*R[1:]) if len(R) > 1 else set()
                if 'saveexec' in op: self.defs |= {'exec'}; self.uses |= {'exec'}
        self.wide_store = self.vmem and ('store_dwordx3' in op or 'store_dwordx4' in op)
        self.states = 1
        if op == 's_nop': self.states = int(ops[0], 0) + 1

def need(p, c):
    n = 0
    vg = lambda s: {r for r in s if r[0] in 'va' and r != 'vcc'}
    sg = lambda s: {r for r in s if r[0] == 's' or r == 'vcc'}
    if p.valu:
        pv = vg(p.defs); ps = sg(p.defs)
        if c.mfma and pv & c.uses: n = max(n, 2)
        if c.valu and c.dpp and pv & c.uses: n = max(n, 2)
        if c.valu and c.op.startswith('v_permlane') and pv & c.uses: n = max(n, 2)
        if c.valu and c.op.startswith(('v_readlane','v_readfirstlane')) and pv & c.uses: n = max(n, 1)
        if p.trans and (c.valu or c.mfma) and pv & c.uses: n = max(n, 1)
        if ('_sdwa' in p.op or 'op_sel' in p.mods) and c.valu and pv & (c.uses | c.defs): n = max(n, 1)
        if ps:
            if c.valu and ps & c.uses:
                n = max(n, 4 if c.op.startswith(('v_readlane','v_writelane')) else 2)
            if c.vmem and ps & c.uses: n = max(n, 5)
            if c.salu and ps & c.uses: n = max(n, 1)
        if 'exec' in p.defs:
            if c.valu and c.dpp: n = max(n, 5)
            if c.mfma: n = max(n, 4)
            if c.valu and c.op.startswith(('v_readlane','v_readfirstlane','v_writelane','v_permlane')): n = max(n, 4)
            if c.valu and 'exec' in c.uses: n = max(n, 2)
            if c.salu and 'exec' in c.uses: n = max(n, 1)
    if p.mfma:
        big = {4: 8, 8: 12}[p.passes]
        if c.mfma:
            if p.defs & c.srcAB: n = max(n, big)
            if p.defs & c.srcC and not (p.defs == c.srcC and p.passes == c.passes): n = max(n, big - 2)
            if p.defs & c.defs and not (p.defs == c.srcC and p.passes == c.passes): n = max(n, big)
        elif c.valu or c.ds or c.vmem:
            if p.defs & (c.uses | c.defs): n = max(n, big)
        if c.valu and p.srcC & c.defs: n = max(n, {4: 3, 8: 7}[p.passes])
    if p.wide_store and (c.valu or c.mfma) and p.store_data & c.defs: n = max(n, 2)
    if p.wide_store and (c.ds or c.vmem) and p.store_data & c.defs: n = max(n, 1)
    if p.ds and p.op.startswith(('ds_write_b128','ds_write_b96','ds_write2_b64')) and c.valu and p.uses & vg(c.defs): n = max(n, 2)
    if p.salu and 'm0' in p.defs and (c.vmem or c.ds): n = max(n, 1)
    return n

class Asm:
    def __init__(self):
        self.items = []
        self.opt = None
        self.nopt = 0
        self.uid = 0
    def I(self, text):
        for t in text.strip().split('\n'):
            t = t.strip()
            if not t or t.startswith(';'):
                if t: self.items.append(('raw', '    ' + t))
                continue
            self.items.append(('i', Ins(t), self.opt))
    def raw(self, text): self.items.append(('raw', text))
    def label(self, name): self.items.append(('raw', name + ':'))
    def newlabel(self, pre='L'):
        self.uid += 1
        return f'{pre}_{self.uid}'
    def opt_begin(self):
        assert self.opt is None
        self.nopt += 1; self.opt = self.nopt
    def opt_end(self): self.opt = None
    def flush(self):
        self.items.append(('flush',))
    def reset(self):
        self.items.append(('reset',))
    def render(self):
        out = []
        hist = []
        W = 14
        for it in self.items:
            if it[0] == 'raw': out.append(it[1]); continue
            if it[0] == 'reset': hist = []; continue
            if it[0] == 'flush':
                worst = 0; dist = 0
                for p, po in reversed(hist[-W:]):
                    req = 0
                    if p.mfma: req = {4: 8, 8: 12}[p.passes]
                    elif p.valu: req = 5 if any(r[0] == 's' or r in ('vcc','exec') for r in p.defs) else 2
                    elif p.wide_store or p.ds: req = 2
                    elif p.salu and 'm0' in p.defs: req = 1
                    worst = max(worst, req - dist)
                    if po is None: dist += p.states
                if worst > 0:
                    out.append(f'    s_nop {worst-1}')
                hist = []
                continue
            c, co = it[1], it[2]
            pad = 0; dist = 0
            k = len(hist) - 1
            while k >= 0 and dist < W:
                p, po = hist[k]
                d = 0
                for q, qo in hist[k+1:]:
                    if qo is None or qo == co or qo == po: d += q.states
                pad = max(pad, need(p, c) - d)
                if po is None or po == co: dist += p.states
                k -= 1
            while pad > 0:
                n = min(pad, 16)
                nop = Ins(f's_nop {n-1}')
                out.append('    ' + nop.text); hist.append((nop, co)); pad -= n
            out.append('    ' + c.text)
            hist.append((c, co))
            if len(hist) > 200: hist = hist[-120:]
        return '\n'.join(out) + '\n'
```
